```python
import torch

def _softmax(x, axis=-1):
    return torch.softmax(x, dim=axis)
def _gelu(x):
    return torch.nn.functional.gelu(x, approximate="tanh")
def _silu(x):
    return torch.nn.functional.silu(x)
def _sigmoid(x):
    return torch.sigmoid(x)
def _layernorm(x, axis=-1, eps=1e-5):
    m = x.mean(dim=axis, keepdim=True)
    v = x.var(dim=axis, keepdim=True, unbiased=False)
    return (x - m) / torch.sqrt(v + eps)
def _scatter_add(tgt, idx, src, axis=0):
    return tgt.clone().index_add_(axis, idx, src)
def _segment_sum(src, seg, n):
    out = torch.zeros((n,) + src.shape[1:], dtype=src.dtype)
    return out.index_add_(0, seg, src)
def _pad(x, pw):
    flat = tuple(v for pair in reversed(pw) for v in pair)
    return torch.nn.functional.pad(x, flat)

kernel_name = 'interleave_layers__sliding_block_cached__mixer_token_mlp__decode'

def setup_inputs():

    _w = (lambda a: (lambda t: t.to(torch.bfloat16) if t.is_floating_point() else t)(torch.as_tensor(a)))
    def _A_setup():
        B, Sq, D = 4, 1, 512
        Hq, Hkv, Sk, Dh = 32, 8, 16384, 128
        assert Hq % Hkv == 0, (Hq, Hkv)
        return {
            "x": _w((lambda *s: torch.randn(*s, dtype=torch.bfloat16) * 0.05)(B, Sq, D)),
            "k_cache": _w((lambda *s: torch.randn(*s, dtype=torch.bfloat16) * 0.8)(B, Hkv, Sk, Dh)),
            "v_cache": _w((lambda *s: torch.randn(*s, dtype=torch.bfloat16) * 1.6)(B, Hkv, Sk, Dh)),
            "wq": _w((lambda *s: torch.randn(*s, dtype=torch.bfloat16) * 0.8)(D, Hq * Dh) * (D ** -0.5)),
            "wo": _w((lambda *s: torch.randn(*s, dtype=torch.bfloat16) * 1.6)(Hq * Dh, D) * ((Hq * Dh) ** -0.5)),
        }
    _A_in = _A_setup()

    def _B_setup():
        B, S, D, F = 4, 1, 512, 1792
        return {
            "x": _w((lambda *s: torch.randn(*s, dtype=torch.bfloat16) * 0.05)(B, S, D)),
            "w1": _w((lambda *s: torch.randn(*s, dtype=torch.bfloat16) * 0.8)(S, F) * (S ** -0.5)),
            "b1": _w((lambda *s: torch.randn(*s, dtype=torch.bfloat16) * 0.2)(F) * 0.02),
            "w2": _w((lambda *s: torch.randn(*s, dtype=torch.bfloat16) * 0.2)(F, S) * (F ** -0.5)),
            "b2": _w((lambda *s: torch.randn(*s, dtype=torch.bfloat16) * 0.2)(S) * 0.02),
        }
    _B_in = _B_setup()

    return {
        "A_x": _A_in["x"],
        "A_k_cache": _A_in["k_cache"],
        "A_v_cache": _A_in["v_cache"],
        "A_wq": _A_in["wq"],
        "A_wo": _A_in["wo"],
        "B_x": _B_in["x"],
        "B_w1": _B_in["w1"],
        "B_b1": _B_in["b1"],
        "B_w2": _B_in["w2"],
        "B_b2": _B_in["b2"],
    }

def reference(A_x, A_k_cache, A_v_cache, A_wq, A_wo, B_x, B_w1, B_b1, B_w2, B_b2):
    def _A_ref(x, k_cache, v_cache, wq, wo):
        B, Sq, D = x.shape
        Hq, Dh = 32, 128
        Hkv, Sk = k_cache.shape[1], k_cache.shape[2]
        W = min(4096, max(256, Sk // 4))
        rep = Hq // Hkv
        q = (lambda x, *d: x.permute(*d))((x @ wq).reshape(B, Sq, Hq, Dh), 0, 2, 1, 3)
        k = (lambda x, n, axis: torch.repeat_interleave(x, n, dim=axis))(k_cache[:, :, Sk - W:, :], rep, axis=1)
        v = (lambda x, n, axis: torch.repeat_interleave(x, n, dim=axis))(v_cache[:, :, Sk - W:, :], rep, axis=1)
        scores = torch.einsum("bhqd,bhkd->bhqk", q, k) * (Dh ** -0.5)
        p = _softmax(scores, axis=-1)
        o = torch.einsum("bhqk,bhkd->bhqd", p, v)
        return (lambda x, *d: x.permute(*d))(o, 0, 2, 1, 3).reshape(B, Sq, Hq * Dh) @ wo

    def _B_ref(x, w1, b1, w2, b2):
        B, S, D = x.shape
        h = _layernorm(x, axis=-1)
        u = torch.einsum("bsd,sf->bdf", h, w1) + b1
        u = _gelu(u)
        y = torch.einsum("bdf,fs->bds", u, w2) + b2
        return (lambda x, *d: x.permute(*d))(y, 0, 2, 1)

    x = A_x
    x = x + _A_ref(_layernorm(x, axis=-1), A_k_cache, A_v_cache, A_wq, A_wo)
    x = x + _B_ref(_layernorm(x, axis=-1), B_w1, B_b1, B_w2, B_b2)
    x = x + _A_ref(_layernorm(x, axis=-1), A_k_cache, A_v_cache, A_wq, A_wo)
    x = x + _B_ref(_layernorm(x, axis=-1), B_w1, B_b1, B_w2, B_b2)
    return x
```

```python
import re
TRANS = ("v_exp_f32", "v_log_f32", "v_rcp_f32", "v_rsq_f32", "v_sqrt_f32")
def regs(tok):
    tok = tok.strip()
    tok = tok.lstrip("-").strip("|")
    m = re.fullmatch(r"(abs|neg)\((.*)\)", tok)
    if m: tok = m.group(2)
    m = re.fullmatch(r"([vs])(\d+)", tok)
    if m: return {(m.group(1), int(m.group(2)))}
    m = re.fullmatch(r"([vs])\[(\d+):(\d+)\]", tok)
    if m: return {(m.group(1), i) for i in range(int(m.group(2)), int(m.group(3)) + 1)}
    if tok == "vcc": return {("s", 106), ("s", 107)}
    if tok == "vcc_lo": return {("s", 106)}
    if tok == "vcc_hi": return {("s", 107)}
    if tok == "exec": return {("s", 126), ("s", 127)}
    return set()
class Ins:
    def __init__(s, text):
        s.text = text
        t = text.split(";")[0].strip()
        s.op = t.split()[0] if t else ""
        rest = t[len(s.op):].strip()
        ops = []; d = 0; cur = ""
        for ch in rest:
            if ch == "[": d += 1
            if ch == "]": d -= 1
            if ch == "," and d == 0: ops.append(cur); cur = ""
            else: cur += ch
        ops.append(cur)
        last = ops[-1].strip().split()
        s.mods = " ".join(last[1:]) if last else ""
        if last: ops[-1] = last[0]
        s.ops = [o.strip() for o in ops if o.strip()]
        op = s.op
        s.label = op.endswith(":")
        s.mfma = op.startswith("v_mfma")
        s.valu = op.startswith("v_") and not s.mfma
        s.vmem = op.startswith("global_") or op.startswith("buffer_")
        s.ds = op.startswith("ds_")
        s.dpp = "_dpp" in op
        s.sdwa = "_sdwa" in op
        s.perml = op.startswith("v_permlane")
        s.rdlane = op.startswith("v_readlane") or op.startswith("v_readfirstlane")
        s.trans = any(op.startswith(x) for x in TRANS)
        s.defs = set(); s.uses = set(); s.data = set(); s.ab = set(); s.c = set()
        R = [regs(o) for o in s.ops]
        U = lambda xs: set().union(*xs) if xs else set()
        if s.mfma:
            s.defs = R[0]; s.ab = R[1] | R[2]; s.c = R[3]; s.uses = s.ab | s.c
        elif s.valu:
            s.defs = R[0]; s.uses = U(R[1:])
            if s.perml or op.startswith("v_swap"): s.defs = R[0] | R[1]; s.uses = R[0] | R[1]
            if op.startswith("v_fmac") or s.dpp or s.sdwa or op.startswith("v_writelane"): s.uses |= R[0]
            if op.startswith("v_cndmask") and len(s.ops) == 3: s.uses |= regs("vcc")
        elif s.vmem:
            if "load" in op: s.defs = R[0]; s.uses = U(R[1:])
            else:
                s.uses = U(R)
                if "x4" in op or "x3" in op: s.data = R[1]
        elif s.ds:
            if "read" in op: s.defs = R[0]; s.uses = U(R[1:])
            else:
                s.uses = U(R)
                if "b128" in op or "b96" in op: s.data = R[1]
        s.states = 1
        if op == "s_nop": s.states = int(s.ops[0], 0) + 1
        if s.label or op.startswith(".") or not op: s.states = 0
def need(p, c):
    n = 0
    vd = {r for r in p.defs if r[0] == "v"}; sd = {r for r in p.defs if r[0] == "s"}
    if p.valu:
        if c.mfma and vd & c.uses: n = max(n, 2)
        if c.valu and (c.dpp or c.perml) and vd & c.uses: n = max(n, 2)
        if c.rdlane and vd & c.uses: n = max(n, 1)
        if c.valu and sd & c.uses: n = max(n, 4 if (c.rdlane or c.op.startswith("v_writelane")) else 2)
        if c.vmem and sd & c.uses: n = max(n, 5)
        if p.trans and (c.valu or c.vmem or c.ds) and vd & c.uses: n = max(n, 1)
        if (p.sdwa or "op_sel" in p.mods and not p.op.startswith("v_pk")) and c.valu and vd & (c.uses | c.defs): n = max(n, 1)
    if p.mfma:
        if c.mfma:
            if p.defs & c.ab: n = max(n, 8)
            if p.defs & c.c and p.defs != c.c: n = max(n, 8)
            if p.defs & c.defs and p.defs != c.c: n = max(n, 8)
        elif (c.valu or c.vmem or c.ds):
            if p.defs & (c.uses | c.defs): n = max(n, 8)
            if p.c & c.defs: n = max(n, 3)
            if p.ab & c.defs: n = max(n, 1)
    if p.data and (c.valu or c.mfma) and p.data & c.defs: n = max(n, 2)
    return n
class Asm:
    def __init__(s): s.L = []
    def __call__(s, text):
        for line in text.split("\n"):
            line = line.strip()
            if line: s.L.append(Ins(line))
    def text(s):
        out = []
        for c in s.L:
            if c.states and c.op != "s_nop":
                d = 0; pad = 0
                for p in reversed(out):
                    if d >= 8: break
                    if p.states: pad = max(pad, need(p, c) - d)
                    d += p.states
                    if p.op in ("s_branch", "s_endpgm", "s_setpc_b64"): break
                if pad > 0: out.append(Ins(f"s_nop {pad-1}"))
            out.append(c)
        return "\n".join(("" if (i.label or i.op.startswith(".") or i.text.startswith(";")) else "  ") + i.text for i in out) + "\n"
```

```python
import sys, struct, math
from asmlib import Asm
NAME = "interleave_layers__sliding_block_cached__mixer_token_mlp__decode"
def f2u(x): return struct.unpack("<I", struct.pack("<f", x))[0]
def hx(x): return "0x%08x" % f2u(x)
LB = 0xA0000; QO = 0; OO = 0x8000; MLO = 0x88000; YO = 0x8C000; TO = 0x9C000
OB = 0; OBS = 2064; MLB = 16640; XT = 17664; RED = 18688; ST1 = 20736; ST2 = 20800; TRED = 20864; CSB = 22912
TP = 25600; LDS = 99328
vX, vZ, aQ, aL4, aML, lOW, lOR, lMW, lMR, lXW, lXR, lRW, lRR, lSW = range(0, 14)
vM, vLs, P0, P1 = 14, 15, 16, 17
t0, t1 = 18, 19
T = 20
WQ = 56; KR = 88; VA = 152; VB = 184; WO = 216
aK, hb = P0, P1
TACC = 152; TA = 252; W2R = 224
sG, sS, sB, sW, sR = 30, 31, 32, 33, 34
sQg, sQp, sOg, sOp, sMg, sMp, sYg, sYp = 36, 38, 40, 42, 44, 46, 48, 50
sTile = 52; sSpin = 56; sLay = 57; sB2 = 58; sC = 59; sMask = 60; sQuad = 68; sPL = 70; sPH = 71; sC1 = 72; sC2 = 74
sSt = 76
ID = "quad_perm:[0,1,2,3]"
FULL = "row_mask:0xf bank_mask:0xf"
def v(a, n=1): return f"v{a}" if n == 1 else f"v[{a}:{a+n-1}]"
def s(a, n=2): return f"s{a}" if n == 1 else f"s[{a}:{a+n-1}]"

def gen(stamps=False, opt=None):
    opt = opt or {}
    A = Asm(); w = A
    nst = [0]
    def stamp():
        if stamps:
            assert nst[0] < 13
            w(f"s_memrealtime s[{sSt+2*nst[0]}:{sSt+2*nst[0]+1}]"); nst[0] += 1
    uid = [0]
    def lab(p): uid[0] += 1; return f"L_{p}{uid[0]}"
    def base(dst, src, off_s):
        w(f"s_add_u32 s{dst}, s{src}, {off_s}"); w(f"s_addc_u32 s{dst+1}, s{src+1}, 0")
    def check(rs, done, again):
        rs = list(rs); cur = None
        while rs:
            if cur is None:
                if len(rs) >= 3: w(f"v_max3_u32 v{t0}, v{rs[0]}, v{rs[1]}, v{rs[2]}"); rs = rs[3:]
                else: w(f"v_max_u32 v{t0}, v{rs[0]}, v{rs[-1]}"); rs = []
                cur = t0
            elif len(rs) >= 2: w(f"v_max3_u32 v{t0}, v{t0}, v{rs[0]}, v{rs[1]}"); rs = rs[2:]
            else: w(f"v_max_u32 v{t0}, v{t0}, v{rs[0]}"); rs = []
        w(f"v_cmp_eq_u32 vcc, -1, v{t0}")
        w(f"s_cbranch_vccz {done}")
        w(f"s_sub_u32 s{sSpin}, s{sSpin}, 1"); w(f"s_cbranch_scc0 {again}"); w("s_branch L_end")
    def poll(loads, rs, first_issued=False, first_wait=0):
        a = lab("pa"); b = lab("pb"); d = lab("pd")
        if first_issued:
            w(f"s_waitcnt vmcnt({first_wait})"); w(f"s_branch {b}")
        w(f"{a}:"); loads(); w("s_waitcnt vmcnt(0)"); w(f"{b}:")
        check(rs, d, a); w(f"{d}:")
    def transp(dst):
        order = [(0,0),(0,1),(0,2),(0,3),(1,0),(2,0),(3,0),(1,1),(1,2),(1,3),(2,1),(3,1),(2,2),(2,3),(3,2),(3,3)]
        for q, kp in order:
            a = dst + 8 + 8*kp + q; b = a + 4
            w(f"v_perm_b32 v{dst+8*q+kp}, v{b}, v{a}, s{sPL}"); w(f"v_perm_b32 v{dst+8*q+4+kp}, v{b}, v{a}, s{sPH}")
    def transp_to(dst, src):
        for q in range(4):
            for kp in range(4):
                a = src + 8*kp + q; b = a + 4
                w(f"v_perm_b32 v{dst+8*q+kp}, v{b}, v{a}, s{sPL}"); w(f"v_perm_b32 v{dst+8*q+4+kp}, v{b}, v{a}, s{sPH}")
    def red8(op, rs):
        for m in ("quad_perm:[1,0,3,2]", "quad_perm:[2,3,0,1]", "row_half_mirror"):
            for r in rs: w(f"{op}_dpp v{r}, v{r}, v{r} {m} {FULL}")
    def red64(rs):
        for m in ("quad_perm:[1,0,3,2]", "quad_perm:[2,3,0,1]", "row_half_mirror", "row_mirror"):
            for r in rs: w(f"v_add_f32_dpp v{r}, v{r}, v{r} {m} {FULL}")
        for r in rs: w(f"v_add_f32_dpp v{r}, v{r}, v{r} row_bcast:15 row_mask:0xa bank_mask:0xf")
        for r in rs: w(f"v_add_f32_dpp v{r}, v{r}, v{r} row_bcast:31 row_mask:0xc bank_mask:0xf")
    def redhead(op, r, tmp):
        w(f"{op}_dpp v{r}, v{r}, v{r} row_ror:4 {FULL}"); w(f"{op}_dpp v{r}, v{r}, v{r} row_ror:8 {FULL}")
        w(f"v_mov_b32 v{tmp}, v{r}"); w(f"v_permlane16_swap_b32 v{tmp}, v{r}"); w(f"{op} v{r}, v{r}, v{tmp}")
        w(f"v_mov_b32 v{tmp}, v{r}"); w(f"v_permlane32_swap_b32 v{tmp}, v{r}"); w(f"{op} v{r}, v{r}, v{tmp}")
    def stats_write(x, st):
        w(f"v_mov_b32 v{t0}, v{x}"); w(f"v_mul_f32 v{t1}, v{x}, v{x}")
        red64([t0, t1])
        w("s_brev_b64 exec, 1"); w(f"ds_write_b64 v{lSW}, v[{t0}:{t1}] offset:{st}"); w("s_mov_b64 exec, -1")
    def stats_fin(a, c1, c0):
        red8("v_add_f32", [a, a+1])
        w(f"v_mul_f32 v{a}, {hx(1/512)}, v{a}"); w(f"v_mul_f32 v{a+1}, {hx(1/512)}, v{a+1}")
        w(f"v_fma_f32 v{a+1}, -v{a}, v{a}, v{a+1}"); w(f"v_max_f32 v{a+1}, 0, v{a+1}")
        if c1 != 1.0: w(f"v_mul_f32 v{a+1}, {hx(c1)}, v{a+1}")
        w(f"v_add_f32 v{a+1}, {hx(c0)}, v{a+1}"); w(f"v_rsq_f32 v{a+1}, v{a+1}")
    def proj(W, val, hi, mid=None):
        Aq = T + 32
        w(f"ds_write_b16{'_d16_hi' if hi else ''} v{lXW}, v{val}")
        w(f"ds_read_b128 {v(Aq,4)}, v{lXR}")
        if mid: mid(); w("s_waitcnt lgkmcnt(1)")
        else: w("s_waitcnt lgkmcnt(0)")
        for d in range(8): w(f"v_mfma_f32_16x16x32_bf16 {v(T+4*d,4)}, {v(Aq,4)}, {v(W+4*d,4)}, 0")
        for d in range(8):
            D = T + 4*d
            if d < 4: w(f"v_add_f32_dpp v{Aq+d}, v{D+1}, v{D} row_ror:8 row_mask:0xf bank_mask:0x3")
            else: w(f"v_add_f32_dpp v{Aq+d-4}, v{D}, v{D+1} row_ror:8 row_mask:0xf bank_mask:0xc")
        w("s_mov_b64 exec, 0xffff"); w(f"ds_write_b128 v{lRW}, {v(Aq,4)}"); w("s_mov_b64 exec, -1")
        w("s_waitcnt lgkmcnt(0)"); w("s_barrier")
    def red_read():
        for i in range(8): w(f"ds_read_b128 {v(T+4*i,4)}, v{lRR} offset:{RED+256*i}")
    def red_sum():
        for st in (1, 2, 4):
            if st == 1:
                for i in range(0, 8, 2):
                    w(f"s_waitcnt lgkmcnt({6-i})")
                    for k in (0, 2): w(f"v_pk_add_f32 {v(T+4*i+k,2)}, {v(T+4*i+k,2)}, {v(T+4*i+4+k,2)}")
            else:
                for i in range(0, 8, 2*st):
                    for k in (0, 2): w(f"v_pk_add_f32 {v(T+4*i+k,2)}, {v(T+4*i+k,2)}, {v(T+4*(i+st)+k,2)}")
    def qfin():
        sk = lab("qf")
        w(f"s_cmp_lg_u32 s{sW}, 0"); w(f"s_cbranch_scc1 {sk}")
        w(f"ds_read_b64 v[{t0}:{t1}], v{aML} offset:{ST2}")
        w(f"ds_read_b128 {v(T+32,4)}, v{lRR} offset:{CSB}")
        red_read()
        w("s_waitcnt lgkmcnt(8)")
        stats_fin(t0, 1.0, 1e-5)
        red_sum()
        for k in range(4): w(f"v_fma_f32 v{T+k}, -v{t0}, v{T+32+k}, v{T+k}")
        for k in range(4): w(f"v_mul_f32 v{T+k}, v{t1}, v{T+k}")
        w(f"v_cvt_pk_bf16_f32 v{T}, v{T}, v{T+1}"); w(f"v_cvt_pk_bf16_f32 v{T+1}, v{T+2}, v{T+3}")
        w(f"v_lshrrev_b32 v{t0}, 1, v{lRR}")
        w(f"v_min_u32 v{T}, -2, v{T}"); w(f"v_min_u32 v{T+1}, -2, v{T+1}")
        w("s_mov_b64 exec, 0xffff"); w(f"global_store_dwordx2 v{t0}, {v(T,2)}, {s(sQp)} sc1"); w("s_mov_b64 exec, -1")
        w(f"{sk}:")
    def qloads():
        for i in range(4): w(f"global_load_dwordx4 {v(T+4*i,4)}, v{aQ}, {s(sQg)} offset:{64*i} sc1")
    def att_s():
        S = T + 16
        for i in range(4):
            for t in range(4):
                w(f"v_mfma_f32_16x16x32_bf16 {v(S+4*t,4)}, {v(KR+16*t+4*i,4)}, {v(T+4*i,4)}, {v(S+4*t,4) if i else 0}")
        for t in range(1, 4):
            for r in range(4): w(f"v_mov_b32_dpp v{S+r}, v{S+4*t+r} {ID} row_mask:0xf bank_mask:{1<<t}")
        w(f"v_max3_f32 v{vM}, v{S}, v{S+1}, v{S+2}"); w(f"v_max_f32 v{vM}, v{vM}, v{S+3}")
        redhead("v_max_f32", vM, t0)
        w(f"v_mul_f32 v{vM}, s{sC}, v{vM}")
        for r in range(4): w(f"v_fma_f32 v{S+r}, v{S+r}, s{sC}, -v{vM}")
        for r in range(4): w(f"v_exp_f32 v{S+r}, v{S+r}")
        w(f"v_cvt_pk_bf16_f32 v{P0}, v{S}, v{S+1}"); w(f"v_cvt_pk_bf16_f32 v{P1}, v{S+2}, v{S+3}")
        w(f"v_add_f32 v{vLs}, v{S}, v{S+1}"); w(f"v_add_f32 v{t1}, v{S+2}, v{S+3}"); w(f"v_add_f32 v{vLs}, v{vLs}, v{t1}")
    def att_pv():
        acc = T + 24
        def mkb(u, pi, B):
            if pi == 0: w(f"s_mov_b64 vcc, {s(sMask+2*u)}")
            for tt in range(2):
                t = 2*pi + tt; n = (4*(u - t)) % 16
                for k in range(2):
                    w(f"v_cndmask_b32_dpp v{B+2*tt+k}, v{P0+k}, v{vZ}, vcc {('row_ror:%d' % n) if n else ID} {FULL}")
        seq = [(u, pi) for u in range(4) for pi in range(2)]
        mkb(*seq[0], T); mkb(*seq[1], T+4)
        for n, (u, pi) in enumerate(seq):
            B = T + 4*(n % 6)
            for q in range(2):
                w(f"v_mfma_f32_16x16x32_bf16 {v(acc+4*q,4)}, {v((VA, VB)[pi]+4*(4*q+u),4)}, {v(B,4)}, {v(acc+4*q,4) if n else 0}")
            if n + 2 < 8: mkb(*seq[n+2], T + 4*((n+2) % 6))
        redhead("v_add_f32", vLs, t0)
        w("s_mov_b64 exec, 15"); w(f"ds_write_b64 v{lMW}, v[{vM}:{vLs}]"); w("s_mov_b64 exec, -1")
        for q in range(2): w(f"ds_write_b128 v{lOW}, {v(acc+4*q,4)} offset:{4*OBS*q}")
        w("s_waitcnt lgkmcnt(0)"); w("s_barrier")
    def comb(ml, o, out, wait=None):
        w(f"v_mov_b32 v{t0}, v{ml}")
        red8("v_max_f32", [ml])
        w(f"v_sub_f32 v{t0}, v{t0}, v{ml}"); w(f"v_exp_f32 v{t0}, v{t0}")
        if wait: w(wait)
        w(f"v_mul_f32 v{ml+1}, v{t0}, v{ml+1}")
        w(f"v_mul_f32_dpp v{out}, v{t0}, v{o} row_newbcast:0 {FULL}")
        ms = ["quad_perm:[1,0,3,2]", "quad_perm:[2,3,0,1]", "row_half_mirror"]
        for i in range(1, 8):
            w(f"v_fmac_f32_dpp v{out}, v{t0}, v{o+i} row_newbcast:{i} {FULL}")
            if i in (1, 3, 5): w(f"v_add_f32_dpp v{ml+1}, v{ml+1}, v{ml+1} {ms[i//2]} {FULL}")
    def table_unit(sg):
        j = sg // 2; pr = sg % 2
        D = T; Wn = T + 16; B2 = T + 24
        m = 0xffff << (16*j)
        w(f"s_mov_b32 vcc_lo, {m & 0xffffffff}"); w(f"s_mov_b32 vcc_hi, {m >> 32}")
        w(f"v_add_u32 v{t0}, 16, v{hb}")
        for st in range(2):
            w(f"v_cndmask_b32 v{Wn+4*st}, v{vZ}, v{(hb, t0)[st]}, vcc")
            w(f"v_mov_b32 v{Wn+4*st+1}, 0"); w(f"v_mov_b32 v{Wn+4*st+2}, 0")
            w(f"v_cndmask_b32 v{Wn+4*st+3}, v{vZ}, v{(hb, t0)[st]}, vcc")
        for st in range(2):
            for p in range(2):
                w(f"v_mfma_f32_16x16x16_bf16 {v(D+8*st+4*p,4)}, {v(TA+2*pr,2)}, {v(Wn+4*st+2*p,2)}, 0")
        for st in range(2):
            U = D + 8*st; X = Wn
            for k in range(0, 8, 2): w(f"v_pk_mul_f32 {v(X+k,2)}, {v(U+k,2)}, {v(U+k,2)}")
            for k in range(0, 8, 2): w(f"v_pk_fma_f32 {v(X+k,2)}, {v(X+k,2)}, {s(sC2)}, {v(T+32,2)}")
            for k in range(0, 8, 2): w(f"v_pk_mul_f32 {v(X+k,2)}, {v(X+k,2)}, {v(U+k,2)}")
            for k in range(8): w(f"v_exp_f32 v{X+k}, v{X+k}")
            for k in range(0, 8, 2): w(f"v_pk_add_f32 {v(X+k,2)}, {v(X+k,2)}, 1.0 op_sel_hi:[1,0]")
            for k in range(8): w(f"v_rcp_f32 v{X+k}, v{X+k}")
            for k in range(0, 8, 2): w(f"v_pk_mul_f32 {v(X+k,2)}, {v(X+k,2)}, {v(U+k,2)}")
            for r in range(4): w(f"v_cvt_pk_bf16_f32 v{B2+4*st+r}, v{X+r}, v{X+4+r}")
            w(f"v_mfma_f32_16x16x32_bf16 {v(TACC+4*st,4)}, {v(W2R+4*sg,4)}, {v(B2+4*st,4)}, {v(TACC+4*st,4) if sg else 0}")
    def tunits(xs):
        w(f"v_mov_b32 v{T+32}, s{sC1}"); w(f"v_mov_b32 v{T+33}, s{sC1}")
        for x in xs: table_unit(x)
    def kload(t):
        w(f"v_add_u32 v{t0}, s{sTile+t}, v{aK}")
        for i in range(4): w(f"global_load_dwordx4 {v(KR+16*t+4*i,4)}, v{t0}, s[6:7] offset:{64*i} nt")
    def vload(t):
        w(f"v_lshl_add_u32 v{t0}, v{aL4}, 2, s{sTile+t}")
        for i in range(4): w(f"global_load_dwordx4 {v(VA+8+16*t+4*i,4)}, v{t0}, s[8:9] offset:{1024*i} nt")
    def wload(dst, a, sb, rng):
        for i in rng:
            w(f"global_load_dwordx4 {v(dst+4*i,4)}, v{a}, {s(sb)} nt")
            if i < 7: w(f"v_add_u32 v{a}, 0x2000, v{a}")

    w(f"; @launch grid=(256,1,1) block=(512,1,1) lds={LDS}")
    w('.amdgcn_target "amdgcn-amd-amdhsa--gfx950"')
    w(".text"); w(f".globl {NAME}_kernel"); w(".p2align 8"); w(f".type {NAME}_kernel,@function"); w(f"{NAME}_kernel:")
    w("s_cmp_ge_u32 s2, 256"); w("s_cbranch_scc1 L_exit")
    stamp()
    w("s_load_dwordx16 s[4:19], s[0:1], 0"); w("s_load_dwordx8 s[20:27], s[0:1], 64"); w("s_load_dwordx2 s[28:29], s[0:1], 96")
    w(f"s_and_b32 s{sG}, s2, 7"); w(f"s_lshr_b32 s{sR}, s2, 3"); w(f"s_and_b32 s{sS}, s{sR}, 7"); w(f"s_lshr_b32 s{sB}, s{sR}, 3")
    ln, tid = T, T + 1
    w(f"v_lshrrev_b32 v{t0}, 6, v0"); w(f"v_mov_b32 v{tid}, v0"); w(f"v_readfirstlane_b32 s{sW}, v{t0}")
    w(f"v_and_b32 v{ln}, 63, v0")
    w(f"v_lshlrev_b32 v{aL4}, 2, v{ln}")
    for k in range(4): w(f"v_mov_b32 v{T+4+k}, -1")
    w(f"v_lshlrev_b32 v{T+2}, 4, v{ln}")
    w(f"s_lshl_b32 s3, s{sB}, 3"); w(f"s_add_u32 s3, s3, s{sG}")
    w(f"s_mul_i32 s35, s2, 5120"); w(f"s_lshl_b32 s56, s{sW}, 10"); w("s_add_u32 s35, s35, s56"); w("s_add_u32 s35, s35, 0x8000")
    w(f"s_lshl_b32 s56, s3, 10"); w(f"s_lshl_b32 s57, s{sS}, 7"); w("s_add_u32 s57, s57, s56")
    w(f"s_cmp_eq_u32 s{sW}, 5"); w("s_cselect_b32 s35, s57, s35"); w("s_cselect_b64 s[58:59], 0xff, -1")
    w(f"v_and_b32 v{aK}, 3, v{ln}"); w(f"v_lshlrev_b32 v{aQ}, 8, v{aK}"); w(f"v_lshlrev_b32 v{aK}, 10, v{aK}")
    w(f"v_bfe_u32 v{t0}, v{ln}, 2, 2"); w(f"v_lshl_add_u32 v{aK}, v{t0}, 8, v{aK}")
    w(f"v_and_b32 v{t1}, 48, v{ln}")
    w(f"v_add_u32 v{aK}, v{aK}, v{t1}"); w(f"v_add_u32 v{aQ}, v{aQ}, v{t1}")
    aW = T + 3
    w(f"v_and_b32 v{aML}, 7, v{ln}"); w(f"v_lshrrev_b32 v{aW}, 3, v{ln}"); w(f"v_lshlrev_b32 v{aW}, 16, v{aW}")
    w(f"v_lshl_add_u32 v{aW}, v{aML}, 4, v{aW}"); w(f"v_lshlrev_b32 v{aML}, 3, v{aML}")
    a1, a2 = T + 8, T + 9
    w(f"v_and_b32 v{lRR}, 15, v{ln}"); w(f"v_lshlrev_b32 v{a1}, 3, v{t1}"); w(f"v_lshl_add_u32 v{a1}, v{lRR}, 2, v{a1}")
    w(f"v_cmp_gt_u32 vcc, 48, v{ln}"); w(f"v_add_u32 v{a2}, 64, v{a1}"); w(f"v_cndmask_b32 v{a2}, v{a1}, v{a2}, vcc")
    w(f"v_lshlrev_b32 v{T+10}, 1, v{tid}")
    kvo = 60
    w(f"s_lshl_b32 s{kvo}, s3, 22"); w(f"s_add_u32 s{kvo}, s{kvo}, 0x300000"); w(f"s_lshl_b32 s61, s{sS}, 17"); w(f"s_add_u32 s{kvo}, s{kvo}, s61")
    w(f"s_lshl_b32 s61, s{sW}, 12"); w(f"s_add_u32 s{kvo}, s{kvo}, s61")
    for t in range(4):
        w(f"s_add_u32 s{sTile+t}, s{sR}, {t}"); w(f"s_and_b32 s{sTile+t}, s{sTile+t}, 3"); w(f"s_lshl_b32 s{sTile+t}, s{sTile+t}, 15")
    w(f"s_lshl_b32 s62, s{sW}, 19"); w(f"s_lshl_b32 s61, s{sG}, 10"); w("s_add_u32 s62, s62, s61"); w(f"s_lshl_b32 s61, s{sS}, 7"); w("s_add_u32 s62, s62, s61")
    w(f"s_mul_i32 s63, s{sW}, 448"); w(f"s_lshl_b32 s64, s{sB}, 10")
    w("s_waitcnt lgkmcnt(0)")
    w("s_load_dword s65, s[22:23], 0") if False else None
    base(14, 28, "s35")
    sk = lab("cl")
    w(f"s_cmp_gt_u32 s{sW}, 5"); w(f"s_cbranch_scc1 {sk}")
    w("s_mov_b64 exec, s[58:59]"); w(f"global_store_dwordx4 v{T+2}, {v(T+4,4)}, s[14:15] sc1"); w("s_mov_b64 exec, -1")
    w(f"{sk}:")
    base(4, 4, "s64"); base(10, 10, "s62")
    w(f"v_mov_b32 v{vX}, 0"); w(f"v_mov_b32 v{vZ}, 0"); w(f"v_mov_b32 v{T+11}, 0")
    w(f"global_load_short_d16_hi v{vX}, v{T+10}, s[4:5]")
    wload(VA + 8, aW, 10, range(0, 4))
    base(66, 16, "s63"); base(68, 18, "s63"); base(70, 20, "s63"); base(6, 6, f"s{kvo}"); base(8, 8, f"s{kvo}")
    w(f"global_load_dword v{T+12}, v{a1}, s[66:67]"); w(f"global_load_dword v{T+13}, v{a2}, s[66:67]")
    w(f"global_load_dword v{T+14}, v{a1}, s[68:69]"); w(f"global_load_dword v{T+15}, v{a2}, s[68:69]")
    w(f"global_load_short_d16_hi v{T+11}, v{vZ}, s[22:23]")
    for i in range(7): w(f"global_load_dwordx4 {v(W2R+4*i,4)}, v{t1}, s[70:71] offset:{64*i}")
    wload(VA + 8, aW, 10, range(4, 8))
    kload(0)
    base(sQg, 28, "s56"); base(sQp, 28, "s57")
    w(f"s_lshl_b32 s56, s3, 3"); w(f"s_add_u32 s56, s56, s{sW}")
    w(f"s_lshl_b32 s57, s56, 11"); w(f"s_add_u32 s57, s57, {OO}"); base(sOg, 28, "s57")
    w(f"s_lshl_b32 s57, s{sS}, 8"); base(sOp, sOg, "s57")
    w(f"s_lshl_b32 s57, s56, 6"); w(f"s_add_u32 s57, s57, {MLO}"); base(sMg, 28, "s57")
    w(f"s_lshl_b32 s57, s{sS}, 3"); base(sMp, sMg, "s57")
    w(f"s_lshl_b32 s56, s{sB}, 14"); w(f"s_add_u32 s56, s56, {YO}")
    w(f"s_lshl_b32 s57, s{sW}, 11"); w("s_add_u32 s57, s57, s56"); base(sYg, 28, "s57")
    w(f"s_xor_b32 s35, s{sS}, {opt.get('sxor', 4)}")
    w(f"s_lshl_b32 s57, s35, 11"); w("s_add_u32 s57, s57, s56"); w(f"s_lshl_b32 s56, s{sG}, 8"); w("s_add_u32 s57, s57, s56"); base(sYp, 28, "s57")
    w(f"s_lshl_b32 s56, s{sG}, 19"); w(f"s_lshr_b32 s57, s{sW}, 1"); w("s_lshl_b32 s57, s57, 17"); w("s_add_u32 s56, s56, s57")
    w(f"s_and_b32 s57, s{sW}, 1"); w("s_lshl_b32 s57, s57, 12"); w("s_add_u32 s56, s56, s57"); w("s_lshl_b32 s57, s35, 7"); w("s_add_u32 s56, s56, s57")
    base(12, 12, "s56"); base(24, 24, "s64")
    w(f"s_mov_b32 s{sSpin}, 0x8000"); w(f"s_mov_b32 s{sLay}, 0")
    w(f"s_mov_b32 s{sC}, {hx(math.log2(math.e) / math.sqrt(128))}")
    for u in range(4):
        m = (~(0x000f000f << (4*u))) & 0xffffffff
        w(f"s_mov_b32 s{sMask+2*u}, 0x{m:08x}"); w(f"s_mov_b32 s{sMask+2*u+1}, 0x{m:08x}")
    w(f"s_mov_b32 s{sQuad}, 0x11111111"); w(f"s_mov_b32 s{sQuad+1}, 0x11111111")
    w(f"s_mov_b32 s{sPL}, 0x05040100"); w(f"s_mov_b32 s{sPH}, 0x07060302")
    c1 = -2 * math.log2(math.e) * math.sqrt(2 / math.pi)
    w(f"s_mov_b32 s{sC1}, {hx(c1)}"); w(f"s_mov_b32 s{sC2}, {hx(c1*0.044715)}"); w(f"s_mov_b32 s{sC2+1}, {hx(c1*0.044715)}")
    w(f"v_and_b32 v{t0}, 3, v{ln}")
    w(f"v_mul_u32_u24 v{lOW}, {OBS}, v{t0}"); w(f"v_and_b32 v{T+2}, 12, v{ln}"); w(f"v_lshl_add_u32 v{lOW}, v{T+2}, 4, v{lOW}")
    w(f"v_add_u32 v{lOW}, v{lOW}, v{t1}"); w(f"s_lshl_b32 s35, s{sW}, 8"); w(f"v_add_u32 v{lOW}, s35, v{lOW}")
    w(f"s_lshl_b32 s14, s{sW}, 3"); w(f"v_mov_b32 v{lSW}, s14"); w(f"s_add_u32 s14, s14, {MLB}"); w(f"v_lshl_add_u32 v{lMW}, v{t0}, 6, s14")
    w(f"s_lshr_b32 s14, s{sW}, 1"); w(f"s_and_b32 s15, s{sW}, 1"); w("s_lshl_b32 s15, s15, 2"); w("s_add_u32 s15, s15, s14"); w(f"s_mul_i32 s15, s15, {OBS}")
    w(f"v_add_u32 v{lOR}, s15, v{aL4}")
    w("s_lshl_b32 s14, s14, 6"); w(f"s_add_u32 s14, s14, {MLB}"); w(f"v_add_u32 v{lMR}, s14, v{aML}")
    w(f"s_lshl_b32 s14, s{sW}, 7"); w(f"s_add_u32 s14, s14, {XT}")
    w(f"v_lshl_add_u32 v{lXW}, v{ln}, 1, s14")
    w(f"v_and_b32 v{T+2}, 1, v{ln}"); w(f"v_lshl_add_u32 v{lXR}, v{t1}, 1, s14"); w(f"v_lshl_add_u32 v{lXR}, v{T+2}, 4, v{lXR}")
    w(f"s_add_u32 s35, s35, {RED}"); w(f"v_lshl_add_u32 v{lRW}, v{aML}, 2, s35"); w(f"v_and_b32 v{T+2}, 8, v{ln}"); w(f"v_lshl_add_u32 v{lRW}, v{T+2}, 1, v{lRW}")
    w("s_and_b32 s14, s2, 127"); w("s_lshl_b32 s14, s14, 5"); w("s_lshr_b32 s15, s2, 7"); w("s_lshl_b32 s15, s15, 15"); w("s_add_u32 s14, s14, s15")
    w(f"s_add_u32 s14, s14, {0x3f800000 + 12800}"); w(f"v_add_u32 v{hb}, s14, v{lRR}")
    w(f"v_lshlrev_b32 v{lRR}, 4, v{lRR}")
    w("s_waitcnt vmcnt(8)")
    w(f"v_perm_b32 v{TA}, v{T+14}, v{T+12}, s{sPL}"); w(f"v_perm_b32 v{TA+1}, v{T+14}, v{T+12}, s{sPH}")
    w(f"v_perm_b32 v{TA+2}, v{T+15}, v{T+13}, s{sPL}"); w(f"v_perm_b32 v{TA+3}, v{T+15}, v{T+13}, s{sPH}")
    w(f"v_readfirstlane_b32 s{sB2}, v{T+11}")
    w("s_barrier")
    sk = lab("fl")
    w(f"s_cmp_lg_u32 s{sW}, 7"); w(f"s_cbranch_scc1 {sk}")
    w("s_and_b32 s14, s2, 0xfc"); w(f"v_mov_b32 v{t0}, s14"); w(f"v_mov_b32 v{t1}, 1")
    w("s_mov_b64 exec, 1"); w(f"global_atomic_add v{t0}, v{t1}, s[26:27] sc1"); w("s_mov_b64 exec, -1")
    w(f"{sk}:")
    stamp()
    tunits([0])
    kload(1)
    w("s_waitcnt vmcnt(8)")
    transp_to(WQ, VA + 8)
    w(f"v_mov_b32 v{t0}, 1.0")
    proj(WQ, t0, True)
    sk = lab("cs")
    w(f"s_cmp_lg_u32 s{sW}, 0"); w(f"s_cbranch_scc1 {sk}")
    red_read(); red_sum(); w(f"ds_write_b128 v{lRR}, {v(T,4)} offset:{CSB}"); w("s_waitcnt lgkmcnt(0)")
    w(f"{sk}:")
    w("s_barrier")
    proj(WQ, vX, True, lambda: stats_write(vX, ST2))
    qfin()
    stamp()
    kload(2); tunits([1]); w("s_barrier")
    kload(3); tunits([2]); w("s_barrier")
    vload(0); tunits([3, 4]); w("s_barrier")
    vload(1); tunits([5, 6])
    w(f"v_mov_b32_dpp v{TACC}, v{TACC+4} {ID} row_mask:0x2 bank_mask:0xf")
    w(f"s_lshl_b32 s14, s{sW}, 8"); w(f"v_add_u32 v{t0}, s14, v{aL4}")
    w(f"ds_write_b32 v{t0}, v{TACC} offset:{TRED}"); w("s_waitcnt lgkmcnt(0)"); w("s_barrier")
    stamp()
    FL = T + 32
    w(f"global_load_dword v{FL}, v{aL4}, s[26:27] sc1")
    vload(2)
    w("s_waitcnt vmcnt(4)")
    a = lab("fa"); d = lab("fd")
    w(f"{a}:"); w(f"v_cmp_ne_u32 vcc, 4, v{FL}"); w(f"s_cbranch_vccz {d}")
    w(f"global_load_dword v{FL}, v{aL4}, s[26:27] sc1"); w("s_waitcnt vmcnt(0)")
    w(f"s_sub_u32 s{sSpin}, s{sSpin}, 1"); w(f"s_cbranch_scc0 {a}"); w("s_branch L_end"); w(f"{d}:")
    sk = lab("tp")
    w(f"s_cmp_lg_u32 s{sW}, 1"); w(f"s_cbranch_scc1 {sk}")
    w(f"v_lshrrev_b32 v{t0}, 1, v{lRR}")
    for i in range(8): w(f"ds_read_b64 {v(T+2*i,2)}, v{t0} offset:{TRED+256*i}")
    w("s_waitcnt lgkmcnt(0)")
    for i in range(1, 8): w(f"v_pk_add_f32 {v(T,2)}, {v(T,2)}, {v(T+2*i,2)}")
    for k in range(2): w(f"v_cvt_pk_bf16_f32 v{T+k}, v{vZ}, v{T+k}")
    for k in range(2): w(f"v_add_f32 v{T+k}, s{sB2}, v{T+k}")
    w(f"v_cvt_pk_bf16_f32 v{T}, v{T}, v{T+1}"); w(f"v_min_u32 v{T}, -2, v{T}")
    w("s_lshl_b32 s14, s2, 6"); w(f"s_add_u32 s14, s14, {TO}"); base(14, 28, "s14")
    w("s_mov_b64 exec, 0xffff"); w(f"global_store_dword v{aL4}, v{T}, s[14:15] sc1"); w("s_mov_b64 exec, -1")
    w(f"{sk}:")
    qloads()
    vload(3)
    transp(VA)
    poll(qloads, range(T, T+16), True, 4)
    stamp()
    att_s()
    aW = T
    w(f"v_lshrrev_b32 v{t0}, 6, v{aL4}"); w(f"v_bfe_u32 v{t1}, v{aL4}, 5, 1"); w(f"v_lshl_add_u32 v{t0}, v{t1}, 6, v{t0}")
    w(f"v_lshlrev_b32 v{t0}, 10, v{t0}"); w(f"v_lshl_add_u32 v{aW}, v{aML}, 1, v{t0}")
    wload(WO + 8, aW, 12, range(8))
    w("s_waitcnt vmcnt(8)")
    stamp()
    transp(VB)
    w("L_loop:")
    att_pv()
    ml = T + 8
    w(f"ds_read_b64 {v(ml,2)}, v{lMR}")
    for i in range(4): w(f"ds_read2st64_b32 {v(T+2*i,2)}, v{lOR} offset0:{2*i} offset1:{2*i+1}")
    w("s_waitcnt lgkmcnt(4)")
    o = T + 12
    comb(ml, T, o, "s_waitcnt lgkmcnt(0)")
    w(f"v_min_u32 v{o}, -2, v{o}"); w(f"v_min_u32 v{ml}, -2, v{ml}"); w(f"v_min_u32 v{ml+1}, -2, v{ml+1}")
    for k in range(1, 4): w(f"v_mov_b32_dpp v{o+k}, v{o} quad_perm:[{k},{k},{k},{k}] {FULL}")
    w(f"s_mov_b64 exec, {s(sQuad)}"); w(f"global_store_dwordx4 v{aL4}, {v(o,4)}, {s(sOp)} sc1")
    w("s_mov_b64 exec, 1"); w(f"global_store_dwordx2 v{vZ}, {v(ml,2)}, {s(sMp)} sc1"); w("s_mov_b64 exec, -1")
    if stamps: w(f"s_cmp_eq_u32 s{sLay}, 0"); sk = lab("st"); w(f"s_cbranch_scc0 {sk}"); stamp(); w(f"{sk}:")
    sk = lab("l0")
    w(f"s_cmp_lg_u32 s{sLay}, 0"); w(f"s_cbranch_scc1 {sk}")
    w(f"s_lshl_b32 s14, s{sW}, 10"); w(f"v_lshl_add_u32 v{T+8}, v{aL4}, 2, s14"); w(f"v_add_u32 v{T+9}, 0x2000, v{T+8}")
    w(f"s_mov_b32 s14, {TO}"); base(14, 28, "s14")
    def tloads():
        w(f"global_load_dwordx4 {v(T,4)}, v{T+8}, s[14:15] sc1"); w(f"global_load_dwordx4 {v(T+4,4)}, v{T+9}, s[14:15] sc1")
    tloads()
    w("s_waitcnt vmcnt(4)")
    transp(WO)
    poll(tloads, range(T, T+8), True, 0)
    w(f"v_add_u32 v{T+9}, 0x10000, v{T+8}")
    w(f"ds_write_b128 v{T+8}, {v(T,4)} offset:{TP}"); w(f"ds_write_b128 v{T+9}, {v(T+4,4)} offset:{TP}")
    w(f"{sk}:")
    def oloads():
        w(f"global_load_dwordx2 {v(ml,2)}, v{aML}, {s(sMg)} sc1")
        for i in range(8): w(f"global_load_dword v{T+i}, v{aL4}, {s(sOg)} offset:{256*i} sc1")
    poll(oloads, range(T, T+10))
    if stamps: w(f"s_cmp_eq_u32 s{sLay}, 0"); sk = lab("st"); w(f"s_cbranch_scc0 {sk}"); stamp(); w(f"{sk}:")
    comb(ml, T, o)
    w(f"v_rcp_f32 v{ml+1}, v{ml+1}"); w(f"v_mul_f32 v{o}, v{o}, v{ml+1}"); w(f"v_cvt_pk_bf16_f32 v{t0}, v{o}, v{o}")
    proj(WO, t0, False)
    sk = lab("yf")
    w(f"s_cmp_lg_u32 s{sW}, 0"); w(f"s_cbranch_scc1 {sk}")
    red_read(); red_sum()
    for k in range(4): w(f"v_min_u32 v{T+k}, -2, v{T+k}")
    w("s_mov_b64 exec, 0xffff"); w(f"global_store_dwordx4 v{lRR}, {v(T,4)}, {s(sYp)} sc1"); w("s_mov_b64 exec, -1")
    w(f"{sk}:")
    if stamps: w(f"s_cmp_eq_u32 s{sLay}, 0"); sk = lab("st"); w(f"s_cbranch_scc0 {sk}"); stamp(); w(f"{sk}:")
    w("s_and_b32 s14, s2, 63"); w(f"s_mul_i32 s14, s14, s{sLay}"); w("s_cmp_lg_u32 s14, 0"); w("s_cbranch_scc1 L_end")
    def yloads():
        for i in range(8): w(f"global_load_dword v{T+i}, v{aL4}, {s(sYg)} offset:{256*i} sc1")
    y = T + 10
    w(f"v_mov_b32 v{y}, 0")
    poll(yloads, range(T, T+8))
    if stamps: w(f"s_cmp_eq_u32 s{sLay}, 0"); sk = lab("st"); w(f"s_cbranch_scc0 {sk}"); stamp(); w(f"{sk}:")
    for st in (2, 4):
        for i in range(0, 8, 2*st): w(f"v_pk_add_f32 {v(T+i,2)}, {v(T+i,2)}, {v(T+i+st,2)}")
    w(f"v_add_f32 v{T}, v{T}, v{T+1}")
    w(f"v_cvt_pk_bf16_f32 v{T}, v{vZ}, v{T}"); w(f"v_add_f32 v{vX}, v{vX}, v{T}"); w(f"v_cvt_pk_bf16_f32 v{vX}, v{vZ}, v{vX}")
    stats_write(vX, ST1)
    w("s_waitcnt lgkmcnt(0)"); w("s_barrier")
    w(f"ds_read_b64 v[{t0}:{t1}], v{aML} offset:{ST1}"); w("s_waitcnt lgkmcnt(0)")
    stats_fin(t0, 1.0 + 1e-5, 1e-10)
    h = T + 8
    w(f"v_sub_f32 v{h}, v{vX}, v{t0}"); w(f"v_mul_f32 v{h}, v{h}, v{t1}"); w(f"v_cvt_pk_bf16_f32 v{h}, v{h}, v{vZ}")
    w(f"v_lshlrev_b32 v{t0}, 1, v{h}"); w(f"ds_read_u16_d16_hi v{y}, v{t0}")
    w(f"v_and_b32 v{t1}, 0x7fff, v{h}"); w(f"v_add_u32 v{t1}, {-12800 & 0xffffffff}, v{t1}"); w(f"v_cmp_lt_u32 vcc, 0xfff, v{t1}")
    w("s_waitcnt lgkmcnt(0)")
    w("s_cbranch_vccnz L_slow"); w("L_back:")
    w(f"v_add_f32 v{vX}, v{vX}, v{y}"); w(f"v_cvt_pk_bf16_f32 v{vX}, v{vZ}, v{vX}")
    w(f"s_cmp_lg_u32 s{sLay}, 0"); w("s_cbranch_scc1 L_out")
    for r in (sQg, sQp, sOg, sOp, sMg, sMp, sYg, sYp): base(r, r, LB)
    w(f"s_mov_b32 s{sLay}, 1")
    proj(WQ, vX, True, lambda: stats_write(vX, ST2))
    qfin()
    stamp()
    poll(qloads, range(T, T+16))
    stamp()
    att_s()
    w("s_nop 1")
    w("s_branch L_loop")
    w("L_out:")
    w(f"s_lshl_b32 s14, s{sW}, 7"); w(f"v_lshrrev_b32 v{t0}, 1, v{aL4}"); w(f"v_add_u32 v{t0}, s14, v{t0}")
    w(f"global_store_short_d16_hi v{t0}, v{vX}, s[24:25]")
    w("L_end:")
    if stamps:
        stamp()
        w("s_waitcnt lgkmcnt(0)")
        n = nst[0]
        w(f"s_lshl_b32 s14, s2, 3"); w(f"s_add_u32 s14, s14, s{sW}"); w(f"s_mul_i32 s14, s14, {8*n}"); w("s_add_u32 s14, s14, 0x10000000")
        base(14, 28, "s14"); w("s_mov_b64 exec, 1")
        for j in range(n):
            w(f"v_mov_b32 v{T}, s{sSt+2*j}"); w(f"v_mov_b32 v{T+1}, s{sSt+2*j+1}")
            w(f"global_store_dwordx2 v{vZ}, {v(T,2)}, s[14:15] offset:{8*j}"); w("s_nop 1")
        print("stamps:", n, file=sys.stderr)
    w("L_exit:")
    w("s_endpgm")
    w("L_slow:")
    w("s_mov_b64 s[14:15], vcc")
    w("L_slow1:")
    w("s_ff1_i32_b64 s3, s[14:15]"); w(f"v_readlane_b32 s35, v{h}, s3"); w("s_lshl_b32 s3, s35, 16")
    w(f"v_mov_b32 v{T}, 0"); w(f"v_mov_b32 v{T+1}, v{aL4}"); w("s_mov_b32 s4, 14")
    w("L_slow2:")
    w(f"global_load_dword v{T+2}, v{T+1}, s[16:17]"); w(f"global_load_dword v{T+3}, v{T+1}, s[18:19]"); w(f"global_load_dword v{T+4}, v{T+1}, s[20:21]")
    w("s_waitcnt vmcnt(0)")
    for half in range(2):
        for k in range(3):
            if half == 0: w(f"v_lshlrev_b32 v{T+5+k}, 16, v{T+2+k}")
            else: w(f"v_and_b32 v{T+5+k}, 0xffff0000, v{T+2+k}")
        w(f"v_fma_f32 v{T+5}, v{T+5}, s3, v{T+6}"); w(f"v_mul_f32 v{T+6}, v{T+5}, v{T+5}")
        w(f"v_mov_b32 v{t0}, s{sC1}"); w(f"v_fma_f32 v{T+6}, v{T+6}, s{sC2}, v{t0}"); w(f"v_mul_f32 v{T+6}, v{T+6}, v{T+5}")
        w(f"v_exp_f32 v{T+6}, v{T+6}"); w(f"v_add_f32 v{T+6}, 1.0, v{T+6}"); w(f"v_rcp_f32 v{T+6}, v{T+6}")
        w(f"v_mul_f32 v{T+6}, v{T+6}, v{T+5}"); w(f"v_cvt_pk_bf16_f32 v{T+6}, v{vZ}, v{T+6}"); w(f"v_fmac_f32 v{T}, v{T+6}, v{T+7}")
    w(f"v_add_u32 v{T+1}, 256, v{T+1}"); w("s_sub_u32 s4, s4, 1"); w("s_cmp_lg_u32 s4, 0"); w("s_cbranch_scc1 L_slow2")
    red64([T])
    w(f"v_cvt_pk_bf16_f32 v{T}, v{vZ}, v{T}"); w(f"v_add_f32 v{T}, s{sB2}, v{T}"); w(f"v_cvt_pk_bf16_f32 v{T}, v{vZ}, v{T}")
    w(f"v_readlane_b32 s4, v{T}, 63"); w(f"v_cmp_eq_u32 vcc, s35, v{h}"); w(f"v_mov_b32 v{T}, s4")
    w(f"v_cndmask_b32 v{y}, v{y}, v{T}, vcc")
    w("s_andn2_b64 s[14:15], s[14:15], vcc"); w("s_cbranch_scc1 L_slow1")
    w("s_branch L_back")
    w('.section .rodata,"a"'); w(".p2align 6"); w(f".amdhsa_kernel {NAME}_kernel")
    for l in ("next_free_vgpr 256", "next_free_sgpr 102", "accum_offset 256", "group_segment_fixed_size 0", "kernarg_size 104",
              "user_sgpr_count 2", "user_sgpr_kernarg_segment_ptr 1", "system_sgpr_workgroup_id_x 1"): w(f".amdhsa_{l}")
    w(".end_amdhsa_kernel")
    return A.text()
if __name__ == "__main__":
    open(f"cdna_kernels/{NAME}.s", "w").write(gen(False))
    open("k_st.s", "w").write(gen(True))
```

```python
import sys
NAME = "interleave_layers__sliding_block_cached__mixer_token_mlp__decode"
def gen(order, nt="nt", waves=8, wnt="", rot=True, klin=False, gmap=0, wm=None):
    L = []
    wnt0 = wnt
    w = L.append
    w(f"; @launch grid=(256,1,1) block=({waves*64},1,1) lds=0")
    w('.amdgcn_target "amdgcn-amd-amdhsa--gfx950"')
    w(".text"); w(f".globl {NAME}_kernel"); w(".p2align 8"); w(f".type {NAME}_kernel,@function"); w(f"{NAME}_kernel:")
    w(f"s_cmp_ge_u32 s2, 256"); w("s_cbranch_scc1 L_end")
    per = 512 // waves
    nld = per // 4
    ntile = nld // 4
    w("s_memrealtime s[40:41]")
    w("s_load_dwordx4 s[4:7], s[0:1], 8")
    w("s_load_dwordx4 s[8:11], s[0:1], 24")
    w("s_load_dwordx2 s[12:13], s[0:1], 96")
    if gmap == 0:
        w("s_and_b32 s14, s2, 7"); w("s_lshr_b32 s15, s2, 3"); w("s_and_b32 s16, s15, 7"); w("s_lshr_b32 s17, s15, 3")
    else:
        w("s_and_b32 s16, s2, 7"); w("s_lshr_b32 s15, s2, 3"); w("s_and_b32 s14, s15, 7"); w("s_lshr_b32 s17, s15, 3")
    w("v_lshrrev_b32 v1, 6, v0"); w("s_nop 0"); w("v_readfirstlane_b32 s18, v1")
    w("v_and_b32 v2, 63, v0")
    w("s_lshl_b32 s19, s17, 3"); w("s_add_u32 s19, s19, s14"); w("s_lshl_b32 s19, s19, 22")
    w("s_add_u32 s19, s19, 0x300000"); w("s_lshl_b32 s20, s16, 17"); w("s_add_u32 s19, s19, s20")
    w(f"s_lshl_b32 s20, s18, 12"); w("s_add_u32 s19, s19, s20")
    w("v_lshlrev_b32 v3, 4, v2")
    w("v_and_b32 v4, 3, v2"); w("v_lshlrev_b32 v4, 10, v4")
    w("v_bfe_u32 v5, v2, 2, 2"); w("v_lshlrev_b32 v5, 8, v5"); w("v_add_u32 v4, v4, v5")
    w("v_lshrrev_b32 v5, 4, v2"); w("v_lshlrev_b32 v5, 4, v5"); w("v_add_u32 v4, v4, v5")
    w("v_and_b32 v6, 7, v2"); w("v_lshlrev_b32 v6, 4, v6"); w("v_lshrrev_b32 v7, 3, v2")
    w("v_lshlrev_b32 v8, 16, v7"); w("v_add_u32 v8, v8, v6")
    w("v_lshlrev_b32 v9, 13, v7"); w("v_add_u32 v9, v9, v6")
    for t in range(ntile):
        if rot:
            w(f"s_add_u32 s{24+t}, s15, {t}"); w(f"s_and_b32 s{24+t}, s{24+t}, {ntile-1}"); w(f"s_mul_i32 s{24+t}, s{24+t}, {waves*4096}")
        else:
            w(f"s_mov_b32 s{24+t}, {t*waves*4096}")
    w("s_waitcnt lgkmcnt(0)")
    w("s_add_u32 s4, s4, s19"); w("s_addc_u32 s5, s5, 0"); w("s_add_u32 s6, s6, s19"); w("s_addc_u32 s7, s7, 0")
    rows = 512 // waves
    w(f"s_mul_i32 s20, s18, {rows*8192}"); w("s_lshl_b32 s21, s14, 10"); w("s_add_u32 s20, s20, s21"); w("s_lshl_b32 s21, s16, 7"); w("s_add_u32 s20, s20, s21")
    w("s_add_u32 s8, s8, s20"); w("s_addc_u32 s9, s9, 0")
    w(f"s_mul_i32 s20, s18, {rows*1024}"); w("s_lshl_b32 s21, s14, 19"); w("s_add_u32 s20, s20, s21"); w("s_lshl_b32 s21, s16, 7"); w("s_add_u32 s20, s20, s21")
    w("s_add_u32 s10, s10, s20"); w("s_addc_u32 s11, s11, 0")
    qs, os_, wx = 8192, 1024, "x4"
    if wm:
        w("s_load_dwordx4 s[8:11], s[0:1], 24"); w("s_waitcnt lgkmcnt(0)")
        if wm in ("x4", "d"):
            w("s_lshl_b32 s21, s15, 5")
            w("s_lshl_b32 s20, s18, 19"); w("s_add_u32 s20, s20, s21"); w("s_lshl_b32 s22, s14, 10"); w("s_add_u32 s20, s20, s22"); w("s_add_u32 s8, s8, s20"); w("s_addc_u32 s9, s9, 0")
            w("s_xor_b32 s21, s21, 512")
            w("s_lshl_b32 s20, s18, 16"); w("s_add_u32 s20, s20, s21"); w("s_lshl_b32 s22, s14, 19"); w("s_add_u32 s20, s20, s22"); w("s_add_u32 s10, s10, s20"); w("s_addc_u32 s11, s11, 0")
            if wm == "x4":
                w("v_and_b32 v6, 1, v2"); w("v_lshlrev_b32 v6, 4, v6"); w("v_lshrrev_b32 v7, 1, v2")
                w("v_lshl_add_u32 v8, v7, 13, v6"); w("v_lshl_add_u32 v9, v7, 10, v6"); qs, os_ = 32*8192, 32*1024
            else:
                w("v_and_b32 v6, 7, v2"); w("v_lshlrev_b32 v6, 2, v6"); w("v_lshrrev_b32 v7, 3, v2")
                w("v_lshl_add_u32 v8, v7, 16, v6"); w("v_lshl_add_u32 v9, v7, 13, v6"); wx = ""
        elif wm == "lin":
            w("s_and_b32 s21, s2, 63"); w("s_lshl_b32 s20, s21, 16"); w("s_lshl_b32 s21, s18, 10"); w("s_add_u32 s20, s20, s21")
            w("s_add_u32 s8, s8, s20"); w("s_addc_u32 s9, s9, 0"); w("s_add_u32 s10, s10, s20"); w("s_addc_u32 s11, s11, 0")
            w("v_mov_b32 v8, v3"); w("v_mov_b32 v9, v3"); qs, os_ = 8192, 8192
        elif wm == "lin2":
            w("s_lshl_b32 s20, s2, 14"); w("s_lshl_b32 s21, s18, 10"); w("s_add_u32 s20, s20, s21")
            w("s_add_u32 s8, s8, s20"); w("s_addc_u32 s9, s9, 0"); w("s_add_u32 s10, s10, s20"); w("s_addc_u32 s11, s11, 0")
            w("v_mov_b32 v8, v3"); w("v_mov_b32 v9, v3"); qs, os_ = 8192, 8192
        elif wm == "h64":
            w("s_lshr_b32 s21, s16, 1"); w("s_lshl_b32 s21, s21, 7"); w("s_and_b32 s22, s16, 1"); w("s_lshl_b32 s22, s22, 6"); w("s_add_u32 s21, s21, s22")
            w("s_lshl_b32 s20, s18, 19"); w("s_add_u32 s20, s20, s21"); w("s_lshl_b32 s22, s14, 10"); w("s_add_u32 s20, s20, s22"); w("s_add_u32 s8, s8, s20"); w("s_addc_u32 s9, s9, 0")
            w("s_xor_b32 s21, s21, 256")
            w("s_lshl_b32 s20, s18, 16"); w("s_add_u32 s20, s20, s21"); w("s_lshl_b32 s22, s14, 19"); w("s_add_u32 s20, s20, s22"); w("s_add_u32 s10, s10, s20"); w("s_addc_u32 s11, s11, 0")
            w("v_and_b32 v6, 3, v2"); w("v_lshlrev_b32 v6, 4, v6"); w("v_and_b32 v7, 4, v2"); w("v_lshl_add_u32 v6, v7, 7, v6"); w("v_lshrrev_b32 v7, 3, v2")
            w("v_lshl_add_u32 v8, v7, 16, v6"); w("v_lshl_add_u32 v9, v7, 13, v6")
        elif wm in ("xor", "rot"):
            if wm == "rot": w("s_lshl_b32 s21, s17, 14"); w("v_add_u32 v8, s21, v8"); w("s_lshl_b32 s21, s17, 11"); w("v_add_u32 v9, s21, v9")
            w("s_lshl_b32 s21, s16, 7")
            w("s_lshl_b32 s20, s18, 19"); w("s_add_u32 s20, s20, s21"); w("s_lshl_b32 s22, s14, 10"); w("s_add_u32 s20, s20, s22"); w("s_add_u32 s8, s8, s20"); w("s_addc_u32 s9, s9, 0")
            w("s_xor_b32 s21, s21, 512")
            w("s_lshl_b32 s20, s18, 16"); w("s_add_u32 s20, s20, s21"); w("s_lshl_b32 s22, s14, 19"); w("s_add_u32 s20, s20, s22"); w("s_add_u32 s10, s10, s20"); w("s_addc_u32 s11, s11, 0")
    w("s_memrealtime s[42:43]")
    nw = rows // 8
    vb = 16; vv = vb + 4 * nw; ab = 4 * nld
    c = dict(q=0, k=0, v=0, o=0)
    ns = 0
    for tok in order:
        if tok == "B": w("s_barrier"); continue
        if tok == "S":
            w(f"s_memrealtime s[{44+2*ns}:{45+2*ns}]"); ns += 1; continue
        i = c[tok]; c[tok] += 1
        if isinstance(wnt0, tuple): wnt = wnt0[0] if i < 2 else wnt0[1]
        if tok == "q":
            w(f"global_load_dwordx4 v[{vb+4*i}:{vb+4*i+3}], v8, s[8:9] {wnt}" if wx else f"global_load_dword v{vb+i}, v8, s[8:9] {wnt}")
            w(f"v_add_u32 v8, {qs}, v8" if wm != "rot" else f"v_xor_b32 v8, {((i ^ (i+1)) & 7) << 13}, v8")
        elif tok == "k":
            if i % 4 == 0: w(f"v_add_u32 v10, s{24+i//4}, v{3 if klin else 4}")
            w(f"global_load_dwordx4 a[{4*i}:{4*i+3}], v10, s[4:5] offset:{(i%4)*(1024 if klin else 64)} {nt}")
        elif tok == "v":
            if i % 4 == 0: w(f"v_add_u32 v11, s{24+i//4}, v3")
            w(f"global_load_dwordx4 v[{vv+4*i}:{vv+4*i+3}], v11, s[6:7] offset:{(i%4)*1024} {nt}")
        elif tok == "o":
            w(f"global_load_dwordx4 a[{ab+4*i}:{ab+4*i+3}], v9, s[10:11] {wnt}" if wx else f"global_load_dword a{ab+i}, v9, s[10:11] {wnt}")
            w(f"v_add_u32 v9, {os_}, v9" if wm != "rot" else f"v_xor_b32 v9, {((i ^ (i+1)) & 7) << 10}, v9")
    assert c["k"] <= nld and c["v"] <= nld and c["q"] <= nw and c["o"] <= nw, c
    while ns < 3:
        w(f"s_memrealtime s[{44+2*ns}:{45+2*ns}]"); ns += 1
    w("s_waitcnt vmcnt(0)"); w("s_memrealtime s[50:51]")
    w("s_waitcnt lgkmcnt(0)")
    w(f"s_mul_i32 s20, s2, {waves}"); w("s_add_u32 s20, s20, s18"); w("s_mul_i32 s20, s20, 48"); w("s_add_u32 s20, s20, 0x10000000")
    w("s_add_u32 s12, s12, s20"); w("s_addc_u32 s13, s13, 0")
    w("v_mov_b32 v10, 0")
    w("s_mov_b64 exec, 1")
    for j in range(6):
        w(f"v_mov_b32 v12, s{40+2*j}"); w(f"v_mov_b32 v13, s{41+2*j}")
        w(f"global_store_dwordx2 v10, v[12:13], s[12:13] offset:{8*j}")
        w("s_nop 1")
    w("L_end:"); w("s_endpgm")
    w('.section .rodata,"a"'); w(".p2align 6"); w(f".amdhsa_kernel {NAME}_kernel")
    nv = 512 // (waves // 4)
    w(f"  .amdhsa_next_free_vgpr {nv}"); w("  .amdhsa_next_free_sgpr 96"); w(f"  .amdhsa_accum_offset {nv//2}")
    w("  .amdhsa_group_segment_fixed_size 0"); w("  .amdhsa_kernarg_size 104"); w("  .amdhsa_user_sgpr_count 2")
    w("  .amdhsa_user_sgpr_kernarg_segment_ptr 1"); w("  .amdhsa_system_sgpr_workgroup_id_x 1"); w(".end_amdhsa_kernel")
    w("; stamps: s0 s1 s2 s3 s4 s5")
    return "\n".join(L) + "\n"
if __name__ == "__main__":
    kv = "kkkkBkkkkBkkkkBkkkkBSvvvvBvvvvBvvvvBvvvvS"
    open("d_kv.s", "w").write(gen(kv))
    open("d_kv_norot.s", "w").write(gen(kv, rot=False))
    open("d_kv_lin.s", "w").write(gen(kv, klin=True))
    open("d_kv_gmap.s", "w").write(gen(kv, gmap=1))
    open("d_kv_nob.s", "w").write(gen(kv.replace("B", "")))
    open("d_seq.s", "w").write(gen("qqqqqqqqBSkkkkBkkkkBkkkkBkkkkBvvvvBvvvvBvvvvBvvvvBSooooooooS"))
    open("d_int2.s", "w").write(gen("qkkqkkBqkkqkkBqkkqkkBqkkqkkBSovvovvBovvovvBovvovvBovvovvS"))
```

```python
from gen_bench4 import gen
import re
kv = "kkkkBkkkkBkkkkBkkkkBSvvvvBvvvvBvvvvBvvvvS"
def mk(name, code, offs):
    t = gen(kv)
    t = t.replace("s_memrealtime s[42:43]", code + "\ns_memrealtime s[42:43]")
    for i in range(3, 0, -1): t = t.replace(f"s[4:5] offset:{64*i} ", f"s[4:5] offset:{offs[i]}  ")
    open(name, "w").write(t)
mk("k0.s", "", [0, 64, 128, 192])
mk("k1.s", "v_and_b32 v4, 7, v2\nv_lshlrev_b32 v4, 8, v4\nv_and_b32 v5, 8, v2\nv_lshl_add_u32 v4, v5, 3, v4\nv_and_b32 v5, 48, v2\nv_add_u32 v4, v4, v5", [0, 128, 2048, 2176])
mk("k2.s", "v_and_b32 v4, 3, v2\nv_lshlrev_b32 v4, 8, v4\nv_and_b32 v5, 12, v2\nv_lshl_add_u32 v4, v5, 4, v4\nv_and_b32 v5, 48, v2\nv_add_u32 v4, v4, v5", [0, 1024, 2048, 3072])
mk("k3.s", "v_and_b32 v4, 3, v2\nv_lshlrev_b32 v4, 4, v4\nv_lshrrev_b32 v5, 2, v2\nv_lshl_add_u32 v4, v5, 8, v4", [0, 64, 128, 192])
mk("k4.s", "v_and_b32 v4, 7, v2\nv_lshlrev_b32 v4, 4, v4\nv_lshrrev_b32 v5, 3, v2\nv_lshl_add_u32 v4, v5, 8, v4", [0, 128, 2048, 2176])
mk("k5.s", "v_and_b32 v4, 14, v2\nv_lshlrev_b32 v4, 7, v4\nv_and_b32 v5, 1, v2\nv_lshl_add_u32 v4, v5, 4, v4\nv_and_b32 v5, 48, v2\nv_lshl_add_u32 v4, v5, 1, v4", [0, 128, 2048, 2176])
mk("k6.s", "v_and_b32 v4, 12, v2\nv_lshlrev_b32 v4, 6, v4\nv_and_b32 v5, 3, v2\nv_lshl_add_u32 v4, v5, 4, v4\nv_and_b32 v5, 48, v2\nv_lshl_add_u32 v4, v5, 2, v4", [0, 1024, 2048, 3072])
```
